```python
import torch

def _softmax(x, axis=-1):
    return torch.softmax(x, dim=axis)
def _gelu(x):
    return torch.nn.functional.gelu(x, approximate="tanh")
def _silu(x):
    return torch.nn.functional.silu(x)
def _sigmoid(x):
    return torch.sigmoid(x)
def _layernorm(x, axis=-1, eps=1e-5):
    m = x.mean(dim=axis, keepdim=True)
    v = x.var(dim=axis, keepdim=True, unbiased=False)
    return (x - m) / torch.sqrt(v + eps)
def _scatter_add(tgt, idx, src, axis=0):
    return tgt.clone().index_add_(axis, idx, src)
def _segment_sum(src, seg, n):
    out = torch.zeros((n,) + src.shape[1:], dtype=src.dtype)
    return out.index_add_(0, seg, src)
def _pad(x, pw):
    flat = tuple(v for pair in reversed(pw) for v in pair)
    return torch.nn.functional.pad(x, flat)

kernel_name = 'parallel_sum__sliding_block_cached__glu_gated_glu__decode'

def setup_inputs():

    _w = (lambda a: (lambda t: t.to(torch.bfloat16) if t.is_floating_point() else t)(torch.as_tensor(a)))
    def _A_setup():
        B, Sq, D = 1, 1, 448
        Hq, Hkv, Sk, Dh = 16, 8, 65536, 256
        assert Hq % Hkv == 0, (Hq, Hkv)
        return {
            "x": _w((lambda *s: torch.randn(*s, dtype=torch.bfloat16) * 0.05)(B, Sq, D)),
            "k_cache": _w((lambda *s: torch.randn(*s, dtype=torch.bfloat16) * 3.2)(B, Hkv, Sk, Dh)),
            "v_cache": _w((lambda *s: torch.randn(*s, dtype=torch.bfloat16) * 1.6)(B, Hkv, Sk, Dh)),
            "wq": _w((lambda *s: torch.randn(*s, dtype=torch.bfloat16) * 3.2)(D, Hq * Dh) * (D ** -0.5)),
            "wo": _w((lambda *s: torch.randn(*s, dtype=torch.bfloat16) * 1.6)(Hq * Dh, D) * ((Hq * Dh) ** -0.5)),
        }
    _A_in = _A_setup()

    def _B_setup():
        B, S, D, F = 1, 1, 448, 1792
        return {
            "x": _w((lambda *s: torch.randn(*s, dtype=torch.bfloat16) * 0.05)(B, S, D)),
            "w_gate": _w((lambda *s: torch.randn(*s, dtype=torch.bfloat16) * 0.1)(D, F)),
            "w_up": _w((lambda *s: torch.randn(*s, dtype=torch.bfloat16) * 0.05)(D, F)),
            "w_down": _w((lambda *s: torch.randn(*s, dtype=torch.bfloat16) * 0.05)(F, D)),
        }
    _B_in = _B_setup()

    return {
        "A_x": _A_in["x"],
        "A_k_cache": _A_in["k_cache"],
        "A_v_cache": _A_in["v_cache"],
        "A_wq": _A_in["wq"],
        "A_wo": _A_in["wo"],
        "B_x": _B_in["x"],
        "B_w_gate": _B_in["w_gate"],
        "B_w_up": _B_in["w_up"],
        "B_w_down": _B_in["w_down"],
    }

def reference(A_x, A_k_cache, A_v_cache, A_wq, A_wo, B_x, B_w_gate, B_w_up, B_w_down):
    def _A_ref(x, k_cache, v_cache, wq, wo):
        B, Sq, D = x.shape
        Hq, Dh = 16, 256
        Hkv, Sk = k_cache.shape[1], k_cache.shape[2]
        W = min(4096, max(256, Sk // 4))
        rep = Hq // Hkv
        q = (lambda x, *d: x.permute(*d))((x @ wq).reshape(B, Sq, Hq, Dh), 0, 2, 1, 3)
        k = (lambda x, n, axis: torch.repeat_interleave(x, n, dim=axis))(k_cache[:, :, Sk - W:, :], rep, axis=1)
        v = (lambda x, n, axis: torch.repeat_interleave(x, n, dim=axis))(v_cache[:, :, Sk - W:, :], rep, axis=1)
        scores = torch.einsum("bhqd,bhkd->bhqk", q, k) * (Dh ** -0.5)
        p = _softmax(scores, axis=-1)
        o = torch.einsum("bhqk,bhkd->bhqd", p, v)
        return (lambda x, *d: x.permute(*d))(o, 0, 2, 1, 3).reshape(B, Sq, Hq * Dh) @ wo

    def _B_ref(x, w_gate, w_up, w_down):
        g = torch.einsum("bsd,df->bsf", x, w_gate)
        u = torch.einsum("bsd,df->bsf", x, w_up)
        h = _sigmoid(g) * u
        return torch.einsum("bsf,fd->bsd", h, w_down)

    x = A_x
    xn = _layernorm(x, axis=-1)
    return x + _A_ref(xn, A_k_cache, A_v_cache, A_wq, A_wo) + _B_ref(xn, B_w_gate, B_w_up, B_w_down)
```

```python
import sys

NAME = "parallel_sum__sliding_block_cached__glu_gated_glu__decode"

WS_Q = 0
WS_G = 8192
WS_U = 16384
WS_PM = 24576
WS_PL = 28672
WS_PO = 32768
WS_OP = 32768 + 524288

L = []
def A(s=""):
    L.append(s)

def bf16r(v, tmp):
    A(f"    v_cvt_pk_bf16_f32 {tmp}, {v}, {v}")
    A(f"    v_lshlrev_b32 {v}, 16, {tmp}")

def k1():
    A(".globl k1_kernel")
    A(".p2align 8")
    A(".type k1_kernel,@function")
    A("k1_kernel:")
    A("    s_cmp_ge_u32 s2, 120")
    A("    s_cbranch_scc1 K1_END")
    A("    s_load_dwordx2 s[4:5], s[0:1], 0")
    A("    s_load_dwordx2 s[6:7], s[0:1], 24")
    A("    s_load_dwordx2 s[8:9], s[0:1], 48")
    A("    s_load_dwordx2 s[10:11], s[0:1], 56")
    A("    s_load_dwordx2 s[12:13], s[0:1], 88")
    A("    s_waitcnt lgkmcnt(0)")
    A("    s_cmp_lt_u32 s2, 64")
    A("    s_cbranch_scc0 K1_NOTQ")
    A("    s_lshl_b32 s21, s2, 6")
    A("    s_movk_i32 s22, 8192")
    A("    s_mov_b64 s[24:25], s[6:7]")
    A("    s_lshl_b32 s26, s21, 1")
    A("    s_add_u32 s26, s26, %d" % WS_Q)
    A("    s_mov_b32 s20, 0")
    A("    s_branch K1_SEL")
    A("K1_NOTQ:")
    A("    s_cmp_lt_u32 s2, 92")
    A("    s_cbranch_scc0 K1_UP")
    A("    s_sub_u32 s21, s2, 64")
    A("    s_lshl_b32 s21, s21, 6")
    A("    s_movk_i32 s22, 3584")
    A("    s_mov_b64 s[24:25], s[8:9]")
    A("    s_lshl_b32 s26, s21, 2")
    A("    s_add_u32 s26, s26, %d" % WS_G)
    A("    s_mov_b32 s20, 1")
    A("    s_branch K1_SEL")
    A("K1_UP:")
    A("    s_sub_u32 s21, s2, 92")
    A("    s_lshl_b32 s21, s21, 6")
    A("    s_movk_i32 s22, 3584")
    A("    s_mov_b64 s[24:25], s[10:11]")
    A("    s_lshl_b32 s26, s21, 2")
    A("    s_add_u32 s26, s26, %d" % WS_U)
    A("    s_mov_b32 s20, 1")
    A("K1_SEL:")
    A("    s_lshl_b32 s27, s21, 1")
    A("    s_add_u32 s28, s24, s27")
    A("    s_addc_u32 s29, s25, 0")
    A("    s_and_b32 s29, s29, 0xffff")
    A("    s_mul_i32 s30, s22, 448")
    A("    s_sub_u32 s30, s30, s27")
    A("    s_mov_b32 s31, 0x00020000")
    A("    s_mov_b32 s32, s4")
    A("    s_and_b32 s33, s5, 0xffff")
    A("    s_movk_i32 s34, 896")
    A("    s_mov_b32 s35, 0x00020000")
    A("    s_mov_b32 s36, s12")
    A("    s_and_b32 s37, s13, 0xffff")
    A("    s_mov_b32 s38, 0x100000")
    A("    s_mov_b32 s39, 0x00020000")
    A("    v_and_b32 v1, 63, v0")
    A("    v_lshrrev_b32 v2, 6, v0")
    A("    v_lshrrev_b32 v3, 3, v1")
    A("    v_and_b32 v4, 7, v1")
    A("    v_mul_u32_u24 v5, 112, v2")
    A("    v_add_u32 v5, v5, v3")
    A("    v_mul_lo_u32 v6, v5, s22")
    A("    v_lshl_add_u32 v6, v4, 4, v6")
    A("    s_lshl_b32 s40, s22, 3")
    A("    s_mov_b32 s41, 0")
    for i in range(14):
        A(f"    buffer_load_dwordx4 v[{64+4*i}:{67+4*i}], v6, s[28:31], s41 offen")
        A("    s_add_u32 s41, s41, s40")
    A("    v_lshlrev_b32 v7, 4, v1")
    A("    buffer_load_dwordx4 v[8:11], v7, s[32:35], 0 offen")
    for n, m in enumerate((1, 2, 4, 8, 16, 32)):
        A(f"    v_xor_b32 v{20+n}, {m}, v1")
        A(f"    v_lshlrev_b32 v{20+n}, 2, v{20+n}")
    A("    s_waitcnt vmcnt(0)")
    for d in range(4):
        A(f"    v_lshlrev_b32 v{12+2*d}, 16, v{8+d}")
        A(f"    v_and_b32 v{13+2*d}, 0xffff0000, v{8+d}")
    A("    v_add_f32 v26, v12, v13")
    for d in range(2, 8):
        A(f"    v_add_f32 v26, v26, v{12+d}")
    def wave_sum(v):
        for n in range(6):
            A(f"    ds_bpermute_b32 v27, v{20+n}, {v}")
            A("    s_waitcnt lgkmcnt(0)")
            A(f"    v_add_f32 {v}, {v}, v27")
    wave_sum("v26")
    A("    v_mul_f32 v26, 0x3b124925, v26")
    A("    v_mov_b32 v28, 0")
    for d in range(8):
        A(f"    v_sub_f32 v29, v{12+d}, v26")
        A("    v_fmac_f32 v28, v29, v29")
    A("    v_cmp_gt_u32 vcc, 56, v1")
    A("    s_nop 1")
    A("    v_cndmask_b32 v28, 0, v28, vcc")
    wave_sum("v28")
    A("    v_mul_f32 v28, 0x3b124925, v28")
    bf16r("v26", "v29")
    bf16r("v28", "v29")
    A("    v_add_f32 v28, 0x3727c5ac, v28")
    bf16r("v28", "v29")
    A("    v_sqrt_f32 v28, v28")
    A("    s_nop 0")
    bf16r("v28", "v29")
    A("    v_rcp_f32 v28, v28")
    A("    s_nop 0")
    for d in range(8):
        A(f"    v_sub_f32 v{12+d}, v{12+d}, v26")
        bf16r(f"v{12+d}", "v29")
        A(f"    v_mul_f32 v{12+d}, v{12+d}, v28")
        bf16r(f"v{12+d}", "v29")
    A("    v_mul_u32_u24 v30, 1792, v2")
    A("    v_lshl_add_u32 v31, v1, 5, v30")
    A("    v_cmp_gt_u32 vcc, 56, v1")
    A("    s_and_saveexec_b64 s[42:43], vcc")
    A("    ds_write_b128 v31, v[12:15]")
    A("    ds_write_b128 v31, v[16:19] offset:16")
    A("    s_mov_b64 exec, s[42:43]")
    A("    s_waitcnt lgkmcnt(0)")
    A("    v_lshl_add_u32 v31, v5, 2, v30")
    for i in range(14):
        A(f"    ds_read_b32 v{32+i}, v31 offset:{i*32}")
    for c in range(8):
        A(f"    v_mov_b32 v{48+c}, 0")
    A("    s_waitcnt lgkmcnt(0)")
    for i in range(14):
        for d in range(4):
            A(f"    v_lshlrev_b32 v56, 16, v{64+4*i+d}")
            A(f"    v_and_b32 v57, 0xffff0000, v{64+4*i+d}")
            A(f"    v_fmac_f32 v{48+2*d}, v{32+i}, v56")
            A(f"    v_fmac_f32 v{49+2*d}, v{32+i}, v57")
    A("    s_barrier")
    A("    v_lshl_add_u32 v31, v2, 3, v3")
    A("    v_lshlrev_b32 v31, 8, v31")
    A("    v_lshl_add_u32 v31, v4, 5, v31")
    A("    ds_write_b128 v31, v[48:51] offset:8192")
    A("    ds_write_b128 v31, v[52:55] offset:8208")
    A("    s_waitcnt lgkmcnt(0)")
    A("    s_barrier")
    A("    v_cmp_gt_u32 vcc, 64, v0")
    A("    s_and_saveexec_b64 s[42:43], vcc")
    A("    s_cbranch_execz K1_END")
    A("    v_lshlrev_b32 v31, 2, v0")
    for g in range(32):
        A(f"    ds_read_b32 v{64+g}, v31 offset:{8192+g*256}")
    A("    s_waitcnt lgkmcnt(0)")
    for g in range(1, 32):
        A(f"    v_add_f32 v64, v64, v{64+g}")
    A("    v_cvt_pk_bf16_f32 v65, v64, v64")
    A("    s_cmp_eq_u32 s20, 0")
    A("    s_cbranch_scc0 K1_F32")
    A("    v_lshlrev_b32 v31, 1, v0")
    A("    buffer_store_short v65, v31, s[36:39], s26 offen")
    A("    s_branch K1_END")
    A("K1_F32:")
    A("    v_lshlrev_b32 v65, 16, v65")
    A("    v_lshlrev_b32 v31, 2, v0")
    A("    buffer_store_dword v65, v31, s[36:39], s26 offen")
    A("K1_END:")
    A("    s_endpgm")

def k2():
    A(".globl k2_kernel")
    A(".p2align 8")
    A(".type k2_kernel,@function")
    A("k2_kernel:")
    A("    s_cmp_ge_u32 s2, 256")
    A("    s_cbranch_scc1 K2_END")
    A("    s_load_dwordx2 s[4:5], s[0:1], 8")
    A("    s_load_dwordx2 s[6:7], s[0:1], 16")
    A("    s_load_dwordx2 s[12:13], s[0:1], 88")
    A("    s_waitcnt lgkmcnt(0)")
    A("    s_lshr_b32 s14, s2, 5")
    A("    s_and_b32 s15, s2, 31")
    A("    s_lshl_b32 s20, s14, 25")
    A("    s_add_u32 s20, s20, 31457280")
    A("    s_add_u32 s16, s4, s20")
    A("    s_addc_u32 s17, s5, 0")
    A("    s_and_b32 s17, s17, 0xffff")
    A("    s_mov_b32 s18, 0x200000")
    A("    s_mov_b32 s19, 0x00020000")
    A("    s_add_u32 s24, s6, s20")
    A("    s_addc_u32 s25, s7, 0")
    A("    s_and_b32 s25, s25, 0xffff")
    A("    s_mov_b32 s26, 0x200000")
    A("    s_mov_b32 s27, 0x00020000")
    A("    s_lshl_b32 s20, s14, 10")
    A("    s_add_u32 s28, s12, s20")
    A("    s_addc_u32 s29, s13, 0")
    A("    s_and_b32 s29, s29, 0xffff")
    A("    s_movk_i32 s30, 1024")
    A("    s_mov_b32 s31, 0x00020000")
    A("    s_mov_b32 s32, s12")
    A("    s_and_b32 s33, s13, 0xffff")
    A("    s_mov_b32 s34, 0x100000")
    A("    s_mov_b32 s35, 0x00020000")
    A("    v_and_b32 v1, 63, v0")
    A("    v_lshrrev_b32 v2, 6, v0")
    A("    v_and_b32 v3, 15, v1")
    A("    v_lshrrev_b32 v4, 4, v1")
    A("    v_lshlrev_b32 v5, 9, v3")
    A("    v_lshl_add_u32 v5, v4, 4, v5")
    for j in range(8):
        A(f"    buffer_load_dwordx4 v[{8+4*j}:{11+4*j}], v5, s[28:31], 0 offen offset:{j*64}")
    A("    s_lshl_b32 s20, s15, 16")
    A("    v_lshlrev_b32 v6, 14, v2")
    A("    v_add_u32 v6, v6, v5")
    A("    v_add_u32 v6, s20, v6")
    A("    s_movk_i32 s21, 8192")
    for t in range(2):
        for j in range(8):
            r = 40 + (t*8+j)*4
            so = "s21" if t else "0"
            A(f"    buffer_load_dwordx4 v[{r}:{r+3}], v6, s[16:19], {so} offen offset:{j*64}")
    A("    v_lshrrev_b32 v7, 5, v1")
    A("    v_lshlrev_b32 v7, 9, v7")
    A("    v_and_b32 v192, 31, v1")
    A("    v_lshl_add_u32 v7, v192, 4, v7")
    A("    v_lshlrev_b32 v192, 14, v2")
    A("    v_add_u32 v7, v7, v192")
    A("    v_add_u32 v7, s20, v7")
    A("    s_mov_b32 s22, 0")
    for i in range(16):
        r = 104 + 4*i
        A(f"    buffer_load_dwordx4 v[{r}:{r+3}], v7, s[24:27], s22 offen")
        A("    s_add_u32 s22, s22, 1024")
    for r in range(8):
        A(f"    v_mov_b32 v{168+r}, 0")
    A("    s_waitcnt vmcnt(16)")
    for t in range(2):
        for j in range(8):
            r = 40 + (t*8+j)*4
            A(f"    v_mfma_f32_16x16x32_bf16 v[{168+4*t}:{171+4*t}], v[{r}:{r+3}], v[{8+4*j}:{11+4*j}], v[{168+4*t}:{171+4*t}]")
    A("    s_nop 7")
    A("    s_nop 1")
    for r in range(8):
        A(f"    v_mul_f32 v{168+r}, 0x3db8aa3b, v{168+r}")
    A("    v_max3_f32 v192, v168, v169, v170")
    A("    v_max3_f32 v192, v192, v171, v172")
    A("    v_max3_f32 v192, v192, v173, v174")
    A("    v_max_f32 v192, v192, v175")
    A("    v_xor_b32 v193, 16, v1")
    A("    v_lshlrev_b32 v193, 2, v193")
    A("    v_xor_b32 v194, 32, v1")
    A("    v_lshlrev_b32 v194, 2, v194")
    A("    ds_bpermute_b32 v195, v193, v192")
    A("    s_waitcnt lgkmcnt(0)")
    A("    v_max_f32 v192, v192, v195")
    A("    ds_bpermute_b32 v195, v194, v192")
    A("    s_waitcnt lgkmcnt(0)")
    A("    v_max_f32 v192, v192, v195")
    A("    v_lshlrev_b32 v195, 3, v2")
    A("    v_lshl_add_u32 v195, v1, 2, v195")
    A("    v_cmp_gt_u32 vcc, 2, v1")
    A("    s_and_saveexec_b64 s[40:41], vcc")
    A("    ds_write_b32 v195, v192")
    A("    s_mov_b64 exec, s[40:41]")
    A("    s_waitcnt lgkmcnt(0)")
    A("    s_barrier")
    A("    v_and_b32 v195, 1, v1")
    A("    v_lshlrev_b32 v195, 2, v195")
    A("    ds_read_b32 v196, v195")
    A("    ds_read_b32 v197, v195 offset:8")
    A("    ds_read_b32 v198, v195 offset:16")
    A("    ds_read_b32 v199, v195 offset:24")
    A("    s_waitcnt lgkmcnt(0)")
    A("    v_max3_f32 v192, v196, v197, v198")
    A("    v_max_f32 v192, v192, v199")
    for r in range(8):
        A(f"    v_sub_f32 v{168+r}, v{168+r}, v192")
        A(f"    v_exp_f32 v{168+r}, v{168+r}")
    A("    s_nop 0")
    A("    v_add_f32 v196, v168, v169")
    for r in range(2, 8):
        A(f"    v_add_f32 v196, v196, v{168+r}")
    A("    v_lshlrev_b32 v195, 8, v2")
    A("    v_lshl_add_u32 v195, v4, 5, v195")
    A("    v_lshl_add_u32 v195, v3, 2, v195")
    A("    v_cmp_gt_u32 vcc, 2, v3")
    A("    s_and_saveexec_b64 s[40:41], vcc")
    for t in range(2):
        for r in range(4):
            A(f"    ds_write_b32 v195, v{168+4*t+r} offset:{64 + (t*16+r)*8}")
    A("    v_lshlrev_b32 v197, 5, v2")
    A("    v_lshl_add_u32 v197, v4, 3, v197")
    A("    v_lshl_add_u32 v197, v3, 2, v197")
    A("    ds_write_b32 v197, v196 offset:2048")
    A("    s_mov_b64 exec, s[40:41]")
    A("    s_waitcnt lgkmcnt(0)")
    A("    v_lshrrev_b32 v195, 5, v1")
    A("    v_lshlrev_b32 v195, 3, v195")
    A("    v_lshl_add_u32 v195, v2, 8, v195")
    for i in range(16):
        A(f"    ds_read_b64 v[{200+2*i}:{201+2*i}], v195 offset:{64+16*i}")
    for r in range(16):
        A(f"    v_mov_b32 v{176+r}, 0")
    A("    s_waitcnt lgkmcnt(0)")
    for i in range(16):
        A(f"    s_waitcnt vmcnt({15-i})")
        for d in range(4):
            r = 104 + 4*i + d
            A(f"    v_lshlrev_b32 v196, 16, v{r}")
            A(f"    v_and_b32 v197, 0xffff0000, v{r}")
            A(f"    v_fmac_f32 v{176+2*d}, v{200+2*i}, v196")
            A(f"    v_fmac_f32 v{177+2*d}, v{200+2*i}, v197")
            A(f"    v_fmac_f32 v{184+2*d}, v{201+2*i}, v196")
            A(f"    v_fmac_f32 v{185+2*d}, v{201+2*i}, v197")
    A("    v_lshrrev_b32 v195, 5, v1")
    A("    v_lshl_add_u32 v195, v2, 1, v195")
    A("    v_lshlrev_b32 v195, 11, v195")
    A("    v_and_b32 v196, 31, v1")
    A("    v_lshl_add_u32 v195, v196, 5, v195")
    A("    ds_write_b128 v195, v[176:179] offset:4096")
    A("    ds_write_b128 v195, v[180:183] offset:4112")
    A("    ds_write_b128 v195, v[184:187] offset:5120")
    A("    ds_write_b128 v195, v[188:191] offset:5136")
    A("    s_waitcnt lgkmcnt(0)")
    A("    s_barrier")
    A("    v_lshlrev_b32 v195, 2, v0")
    for q in range(2):
        for p in range(8):
            A(f"    ds_read_b32 v{200+q*8+p}, v195 offset:{4096 + p*2048 + q*1024}")
    A("    v_and_b32 v196, 1, v0")
    A("    v_lshlrev_b32 v196, 2, v196")
    for p in range(16):
        A(f"    ds_read_b32 v{216+p}, v196 offset:{2048 + p*8}")
    A("    s_waitcnt lgkmcnt(0)")
    for q in range(2):
        for p in range(1, 8):
            A(f"    v_add_f32 v{200+q*8}, v{200+q*8}, v{200+q*8+p}")
    for p in range(1, 16):
        A(f"    v_add_f32 v216, v216, v{216+p}")
    A("    s_lshl_b32 s20, s14, 6")
    A("    s_add_u32 s20, s20, s15")
    A("    s_lshl_b32 s21, s20, 10")
    A("    s_add_u32 s21, s21, %d" % WS_PO)
    A("    buffer_store_dword v200, v195, s[32:35], s21 offen")
    A("    s_add_u32 s21, s21, 32768")
    A("    buffer_store_dword v208, v195, s[32:35], s21 offen")
    A("    v_cmp_gt_u32 vcc, 2, v0")
    A("    s_and_saveexec_b64 s[40:41], vcc")
    A("    s_cbranch_execz K2_END")
    A("    v_lshlrev_b32 v195, 7, v0")
    A("    s_lshl_b32 s21, s20, 2")
    A("    s_add_u32 s22, s21, %d" % WS_PM)
    A("    s_add_u32 s23, s21, %d" % WS_PL)
    A("    buffer_store_dword v192, v195, s[32:35], s22 offen")
    A("    buffer_store_dword v216, v195, s[32:35], s23 offen")
    A("K2_END:")
    A("    s_endpgm")

def k3():
    A(".globl k3_kernel")
    A(".p2align 8")
    A(".type k3_kernel,@function")
    A("k3_kernel:")
    A("    s_cmp_ge_u32 s2, 92")
    A("    s_cbranch_scc1 K3_END")
    A("    s_load_dwordx2 s[4:5], s[0:1], 0")
    A("    s_load_dwordx2 s[6:7], s[0:1], 32")
    A("    s_load_dwordx2 s[8:9], s[0:1], 64")
    A("    s_load_dwordx2 s[10:11], s[0:1], 72")
    A("    s_load_dwordx2 s[12:13], s[0:1], 88")
    A("    s_load_dwordx2 s[14:15], s[0:1], 80")
    A("    s_waitcnt lgkmcnt(0)")
    A("    s_cmp_lt_u32 s2, 64")
    A("    s_cselect_b32 s20, s6, s8")
    A("    s_cselect_b32 s21, s7, s9")
    A("    s_cselect_b32 s22, 0, 64")
    A("    s_sub_u32 s22, s2, s22")
    A("    s_mul_i32 s23, s22, 57344")
    A("    s_add_u32 s16, s20, s23")
    A("    s_addc_u32 s17, s21, 0")
    A("    s_and_b32 s17, s17, 0xffff")
    A("    s_mov_b32 s18, 57344")
    A("    s_mov_b32 s19, 0x00020000")
    A("    s_mov_b32 s24, s12")
    A("    s_and_b32 s25, s13, 0xffff")
    A("    s_mov_b32 s26, 0x100000")
    A("    s_mov_b32 s27, 0x00020000")
    A("    v_lshlrev_b32 v1, 4, v0")
    A("    s_mov_b32 s28, 0")
    for it in range(8):
        A(f"    buffer_load_dwordx4 v[{64+4*it}:{67+4*it}], v1, s[16:19], s28 offen")
        A("    s_add_u32 s28, s28, 7168")
    A("    v_cmp_gt_u32 vcc, 64, v0")
    A("    s_and_saveexec_b64 s[40:41], vcc")
    A("    s_cbranch_execz K3_COEF_DONE")
    A("    s_cmp_lt_u32 s2, 64")
    A("    s_cbranch_scc0 K3_HCOEF")
    A("    s_lshr_b32 s29, s2, 2")
    A("    s_and_b32 s30, s2, 3")
    A("    s_lshl_b32 s31, s29, 7")
    A("    s_add_u32 s32, s31, %d" % WS_PM)
    A("    s_add_u32 s33, s31, %d" % WS_PL)
    A("    v_mov_b32 v2, 0")
    A("    s_lshl_b32 s34, s29, 15")
    A("    s_lshl_b32 s35, s30, 8")
    A("    s_add_u32 s34, s34, s35")
    A("    s_add_u32 s34, s34, %d" % WS_PO)
    A("    v_lshlrev_b32 v3, 2, v0")
    for s in range(32):
        A(f"    buffer_load_dword v{100+s}, v2, s[24:27], s32 offen offset:{4*s}")
        A(f"    buffer_load_dword v{132+s}, v2, s[24:27], s33 offen offset:{4*s}")
    A("    s_waitcnt vmcnt(0)")
    for s in range(32):
        A(f"    buffer_load_dword v{164+s}, v3, s[24:27], s34 offen")
        A("    s_add_u32 s34, s34, 1024")
    A("    v_max_f32 v4, v100, v101")
    for s in range(2, 32):
        A(f"    v_max_f32 v4, v4, v{100+s}")
    A("    v_mov_b32 v5, 0")
    for s in range(32):
        A(f"    v_sub_f32 v{100+s}, v{100+s}, v4")
        A(f"    v_exp_f32 v{100+s}, v{100+s}")
        A("    s_nop 0")
        A(f"    v_fmac_f32 v5, v{100+s}, v{132+s}")
    A("    v_mov_b32 v6, 0")
    A("    s_waitcnt vmcnt(0)")
    for s in range(32):
        A(f"    v_fmac_f32 v6, v{100+s}, v{164+s}")
    A("    v_rcp_f32 v5, v5")
    A("    s_nop 0")
    A("    v_mul_f32 v6, v6, v5")
    bf16r("v6", "v7")
    A("    s_branch K3_COEF_ST")
    A("K3_HCOEF:")
    A("    s_sub_u32 s29, s2, 64")
    A("    s_lshl_b32 s29, s29, 8")
    A("    s_add_u32 s30, s29, %d" % WS_G)
    A("    s_add_u32 s31, s29, %d" % WS_U)
    A("    v_lshlrev_b32 v3, 2, v0")
    A("    buffer_load_dword v4, v3, s[24:27], s30 offen")
    A("    buffer_load_dword v5, v3, s[24:27], s31 offen")
    A("    s_waitcnt vmcnt(0)")
    A("    v_mul_f32 v4, 0xbfb8aa3b, v4")
    A("    v_exp_f32 v4, v4")
    A("    s_nop 0")
    A("    v_add_f32 v4, 1.0, v4")
    A("    v_rcp_f32 v4, v4")
    A("    s_nop 0")
    bf16r("v4", "v7")
    A("    v_mul_f32 v6, v4, v5")
    bf16r("v6", "v7")
    A("K3_COEF_ST:")
    A("    v_lshlrev_b32 v3, 2, v0")
    A("    ds_write_b32 v3, v6")
    A("K3_COEF_DONE:")
    A("    s_mov_b64 exec, s[40:41]")
    A("    s_waitcnt lgkmcnt(0)")
    A("    s_barrier")
    A("    v_mul_u32_u24 v2, 1171, v0")
    A("    v_lshrrev_b32 v2, 16, v2")
    A("    v_lshlrev_b32 v3, 2, v2")
    for it in range(8):
        A(f"    ds_read_b32 v{8+it}, v3 offset:{it*32}")
    for c in range(8):
        A(f"    v_mov_b32 v{16+c}, 0")
    A("    s_waitcnt lgkmcnt(0)")
    A("    s_waitcnt vmcnt(0)")
    for it in range(8):
        for d in range(4):
            r = 64 + 4*it + d
            A(f"    v_lshlrev_b32 v24, 16, v{r}")
            A(f"    v_and_b32 v25, 0xffff0000, v{r}")
            A(f"    v_fmac_f32 v{16+2*d}, v{8+it}, v24")
            A(f"    v_fmac_f32 v{17+2*d}, v{8+it}, v25")
    A("    v_lshlrev_b32 v3, 5, v0")
    A("    ds_write_b128 v3, v[16:19] offset:1024")
    A("    ds_write_b128 v3, v[20:23] offset:1040")
    A("    s_waitcnt lgkmcnt(0)")
    A("    s_barrier")
    A("    v_lshlrev_b32 v3, 2, v0")
    for g in range(8):
        A(f"    ds_read_b32 v{8+g}, v3 offset:{1024+g*1792}")
    A("    s_waitcnt lgkmcnt(0)")
    for g in range(1, 8):
        A(f"    v_add_f32 v8, v8, v{8+g}")
    A("    s_mul_i32 s28, s2, 1792")
    A("    s_add_u32 s28, s28, %d" % WS_OP)
    A("    buffer_store_dword v8, v3, s[24:27], s28 offen sc1")
    A("    s_waitcnt vmcnt(0)")
    A("    s_barrier")
    A("    v_cmp_eq_u32 vcc, 0, v0")
    A("    s_and_saveexec_b64 s[40:41], vcc")
    A("    v_mov_b32 v4, 0")
    A("    v_mov_b32 v5, 1")
    A("    global_atomic_add v6, v4, v5, s[14:15] sc0")
    A("    s_waitcnt vmcnt(0)")
    A("    v_mov_b32 v4, 0")
    A("    ds_write_b32 v4, v6 offset:16384")
    A("    s_mov_b64 exec, s[40:41]")
    A("    s_waitcnt lgkmcnt(0)")
    A("    s_barrier")
    A("    v_mov_b32 v4, 0")
    A("    ds_read_b32 v6, v4 offset:16384")
    A("    s_waitcnt lgkmcnt(0)")
    A("    v_readfirstlane_b32 s29, v6")
    A("    s_cmp_eq_u32 s29, 91")
    A("    s_cbranch_scc0 K3_END")
    A("    s_mov_b32 s28, %d" % WS_OP)
    for b in range(92):
        A(f"    buffer_load_dword v{64+b}, v3, s[24:27], s28 offen sc1")
        A("    s_add_u32 s28, s28, 1792")
    A("    s_mov_b32 s32, s4")
    A("    s_and_b32 s33, s5, 0xffff")
    A("    s_movk_i32 s34, 896")
    A("    s_mov_b32 s35, 0x00020000")
    A("    v_lshlrev_b32 v4, 1, v0")
    A("    buffer_load_ushort v5, v4, s[32:35], 0 offen")
    A("    s_waitcnt vmcnt(0)")
    A("    v_lshlrev_b32 v5, 16, v5")
    for b in range(1, 64):
        A(f"    v_add_f32 v64, v64, v{64+b}")
    for b in range(65, 92):
        A(f"    v_add_f32 v128, v128, v{64+b}")
    bf16r("v64", "v7")
    bf16r("v128", "v7")
    A("    v_add_f32 v5, v5, v64")
    bf16r("v5", "v7")
    A("    v_add_f32 v5, v5, v128")
    A("    v_cvt_pk_bf16_f32 v5, v5, v5")
    A("    s_mov_b32 s32, s10")
    A("    s_and_b32 s33, s11, 0xffff")
    A("    s_movk_i32 s34, 896")
    A("    s_mov_b32 s35, 0x00020000")
    A("    buffer_store_short v5, v4, s[32:35], 0 offen")
    A("K3_END:")
    A("    s_endpgm")

def desc(name, vgpr, sgpr):
    A(".p2align 6")
    A(f".amdhsa_kernel {name}")
    A(f"  .amdhsa_next_free_vgpr {vgpr}")
    A(f"  .amdhsa_next_free_sgpr {sgpr}")
    A(f"  .amdhsa_accum_offset {((vgpr+3)//4)*4}")
    A("  .amdhsa_group_segment_fixed_size 0")
    A("  .amdhsa_kernarg_size 96")
    A("  .amdhsa_user_sgpr_count 2")
    A("  .amdhsa_user_sgpr_kernarg_segment_ptr 1")
    A("  .amdhsa_system_sgpr_workgroup_id_x 1")
    A(".end_amdhsa_kernel")

A("; @launch kernel=k1_kernel grid=(120,1,1) block=(256,1,1) lds=16384")
A("; @launch kernel=k2_kernel grid=(256,1,1) block=(256,1,1) lds=20480")
A("; @launch kernel=k3_kernel grid=(92,1,1) block=(448,1,1) lds=20480")
A('.amdgcn_target "amdgcn-amd-amdhsa--gfx950"')
A(".text")
k1()
k2()
k3()
A('.section .rodata,"a"')
desc("k1_kernel", 128, 64)
desc("k2_kernel", 240, 64)
desc("k3_kernel", 200, 64)
open(sys.argv[1] if len(sys.argv) > 1 else f"cdna_kernels/{NAME}.s", "w").write("\n".join(L) + "\n")
```

```python
import sys

NAME = "parallel_sum__sliding_block_cached__glu_gated_glu__decode"

WS_Q = 0
WS_G = 8192
WS_U = 16384
WS_PM = 24576
WS_PL = 28672
WS_PO = 32768
WS_OP = 32768 + 524288

L = []
def A(s=""):
    L.append(s)

def bf16r(v, tmp):
    A(f"    v_cvt_pk_bf16_f32 {tmp}, {v}, {v}")
    A(f"    v_lshlrev_b32 {v}, 16, {tmp}")

def k1():
    A(".globl k1_kernel")
    A(".p2align 8")
    A(".type k1_kernel,@function")
    A("k1_kernel:")
    A("    s_cmp_ge_u32 s2, 120")
    A("    s_cbranch_scc1 K1_END")
    A("    s_load_dwordx2 s[4:5], s[0:1], 0")
    A("    s_load_dwordx2 s[6:7], s[0:1], 24")
    A("    s_load_dwordx2 s[8:9], s[0:1], 48")
    A("    s_load_dwordx2 s[10:11], s[0:1], 56")
    A("    s_load_dwordx2 s[12:13], s[0:1], 88")
    A("    s_waitcnt lgkmcnt(0)")
    A("    s_cmp_lt_u32 s2, 64")
    A("    s_cbranch_scc0 K1_NOTQ")
    A("    s_lshl_b32 s21, s2, 6")
    A("    s_movk_i32 s22, 8192")
    A("    s_mov_b64 s[24:25], s[6:7]")
    A("    s_lshl_b32 s26, s21, 1")
    A("    s_add_u32 s26, s26, %d" % WS_Q)
    A("    s_mov_b32 s20, 0")
    A("    s_branch K1_SEL")
    A("K1_NOTQ:")
    A("    s_cmp_lt_u32 s2, 92")
    A("    s_cbranch_scc0 K1_UP")
    A("    s_sub_u32 s21, s2, 64")
    A("    s_lshl_b32 s21, s21, 6")
    A("    s_movk_i32 s22, 3584")
    A("    s_mov_b64 s[24:25], s[8:9]")
    A("    s_lshl_b32 s26, s21, 2")
    A("    s_add_u32 s26, s26, %d" % WS_G)
    A("    s_mov_b32 s20, 1")
    A("    s_branch K1_SEL")
    A("K1_UP:")
    A("    s_sub_u32 s21, s2, 92")
    A("    s_lshl_b32 s21, s21, 6")
    A("    s_movk_i32 s22, 3584")
    A("    s_mov_b64 s[24:25], s[10:11]")
    A("    s_lshl_b32 s26, s21, 2")
    A("    s_add_u32 s26, s26, %d" % WS_U)
    A("    s_mov_b32 s20, 1")
    A("K1_SEL:")
    A("    s_lshl_b32 s27, s21, 1")
    A("    s_add_u32 s28, s24, s27")
    A("    s_addc_u32 s29, s25, 0")
    A("    s_and_b32 s29, s29, 0xffff")
    A("    s_mul_i32 s30, s22, 448")
    A("    s_sub_u32 s30, s30, s27")
    A("    s_mov_b32 s31, 0x00020000")
    A("    s_mov_b32 s32, s4")
    A("    s_and_b32 s33, s5, 0xffff")
    A("    s_movk_i32 s34, 896")
    A("    s_mov_b32 s35, 0x00020000")
    A("    s_mov_b32 s36, s12")
    A("    s_and_b32 s37, s13, 0xffff")
    A("    s_mov_b32 s38, 0x100000")
    A("    s_mov_b32 s39, 0x00020000")
    A("    v_and_b32 v1, 63, v0")
    A("    v_lshrrev_b32 v2, 6, v0")
    A("    v_lshrrev_b32 v3, 3, v1")
    A("    v_and_b32 v4, 7, v1")
    A("    v_mul_u32_u24 v5, 112, v2")
    A("    v_add_u32 v5, v5, v3")
    A("    v_mul_lo_u32 v6, v5, s22")
    A("    v_lshl_add_u32 v6, v4, 4, v6")
    A("    s_lshl_b32 s40, s22, 3")
    A("    s_mov_b32 s41, 0")
    for i in range(14):
        A(f"    buffer_load_dwordx4 v[{64+4*i}:{67+4*i}], v6, s[28:31], s41 offen sc1 nt")
        A("    s_add_u32 s41, s41, s40")
    A("    v_lshlrev_b32 v7, 4, v1")
    A("    buffer_load_dwordx4 v[8:11], v7, s[32:35], 0 offen")
    for n, m in enumerate((1, 2, 4, 8, 16, 32)):
        A(f"    v_xor_b32 v{20+n}, {m}, v1")
        A(f"    v_lshlrev_b32 v{20+n}, 2, v{20+n}")
    A("    s_waitcnt vmcnt(0)")
    for d in range(4):
        A(f"    v_lshlrev_b32 v{12+2*d}, 16, v{8+d}")
        A(f"    v_and_b32 v{13+2*d}, 0xffff0000, v{8+d}")
    A("    v_add_f32 v26, v12, v13")
    for d in range(2, 8):
        A(f"    v_add_f32 v26, v26, v{12+d}")
    def wave_sum(v):
        for n in range(6):
            A(f"    ds_bpermute_b32 v27, v{20+n}, {v}")
            A("    s_waitcnt lgkmcnt(0)")
            A(f"    v_add_f32 {v}, {v}, v27")
    wave_sum("v26")
    A("    v_mul_f32 v26, 0x3b124925, v26")
    A("    v_mov_b32 v28, 0")
    for d in range(8):
        A(f"    v_sub_f32 v29, v{12+d}, v26")
        A("    v_fmac_f32 v28, v29, v29")
    A("    v_cmp_gt_u32 vcc, 56, v1")
    A("    s_nop 1")
    A("    v_cndmask_b32 v28, 0, v28, vcc")
    wave_sum("v28")
    A("    v_mul_f32 v28, 0x3b124925, v28")
    bf16r("v26", "v29")
    bf16r("v28", "v29")
    A("    v_add_f32 v28, 0x3727c5ac, v28")
    bf16r("v28", "v29")
    A("    v_sqrt_f32 v28, v28")
    A("    s_nop 0")
    bf16r("v28", "v29")
    A("    v_rcp_f32 v28, v28")
    A("    s_nop 0")
    for d in range(8):
        A(f"    v_sub_f32 v{12+d}, v{12+d}, v26")
        bf16r(f"v{12+d}", "v29")
        A(f"    v_mul_f32 v{12+d}, v{12+d}, v28")
        bf16r(f"v{12+d}", "v29")
    A("    v_mul_u32_u24 v30, 1792, v2")
    A("    v_lshl_add_u32 v31, v1, 5, v30")
    A("    v_cmp_gt_u32 vcc, 56, v1")
    A("    s_and_saveexec_b64 s[42:43], vcc")
    A("    ds_write_b128 v31, v[12:15]")
    A("    ds_write_b128 v31, v[16:19] offset:16")
    A("    s_mov_b64 exec, s[42:43]")
    A("    s_waitcnt lgkmcnt(0)")
    A("    v_lshl_add_u32 v31, v5, 2, v30")
    for i in range(14):
        A(f"    ds_read_b32 v{32+i}, v31 offset:{i*32}")
    for c in range(8):
        A(f"    v_mov_b32 v{48+c}, 0")
    A("    s_waitcnt lgkmcnt(0)")
    for i in range(14):
        for d in range(4):
            A(f"    v_lshlrev_b32 v56, 16, v{64+4*i+d}")
            A(f"    v_and_b32 v57, 0xffff0000, v{64+4*i+d}")
            A(f"    v_fmac_f32 v{48+2*d}, v{32+i}, v56")
            A(f"    v_fmac_f32 v{49+2*d}, v{32+i}, v57")
    A("    s_barrier")
    A("    v_lshl_add_u32 v31, v2, 3, v3")
    A("    v_lshlrev_b32 v31, 8, v31")
    A("    v_lshl_add_u32 v31, v4, 5, v31")
    A("    ds_write_b128 v31, v[48:51] offset:8192")
    A("    ds_write_b128 v31, v[52:55] offset:8208")
    A("    s_waitcnt lgkmcnt(0)")
    A("    s_barrier")
    A("    v_cmp_gt_u32 vcc, 64, v0")
    A("    s_and_saveexec_b64 s[42:43], vcc")
    A("    s_cbranch_execz K1_END")
    A("    v_lshlrev_b32 v31, 2, v0")
    for g in range(32):
        A(f"    ds_read_b32 v{64+g}, v31 offset:{8192+g*256}")
    A("    s_waitcnt lgkmcnt(0)")
    for g in range(1, 32):
        A(f"    v_add_f32 v64, v64, v{64+g}")
    A("    v_cvt_pk_bf16_f32 v65, v64, v64")
    A("    s_cmp_eq_u32 s20, 0")
    A("    s_cbranch_scc0 K1_F32")
    A("    v_lshlrev_b32 v31, 1, v0")
    A("    buffer_store_short v65, v31, s[36:39], s26 offen")
    A("    s_branch K1_END")
    A("K1_F32:")
    A("    v_lshlrev_b32 v65, 16, v65")
    A("    v_lshlrev_b32 v31, 2, v0")
    A("    buffer_store_dword v65, v31, s[36:39], s26 offen")
    A("K1_END:")
    A("    s_endpgm")

def k2():
    A(".globl k2_kernel")
    A(".p2align 8")
    A(".type k2_kernel,@function")
    A("k2_kernel:")
    A("    s_cmp_ge_u32 s2, 256")
    A("    s_cbranch_scc1 K2_END")
    A("    s_load_dwordx2 s[4:5], s[0:1], 8")
    A("    s_load_dwordx2 s[6:7], s[0:1], 16")
    A("    s_load_dwordx2 s[12:13], s[0:1], 88")
    A("    s_waitcnt lgkmcnt(0)")
    A("    s_lshr_b32 s14, s2, 5")
    A("    s_and_b32 s15, s2, 31")
    A("    s_lshl_b32 s20, s14, 25")
    A("    s_add_u32 s20, s20, 31457280")
    A("    s_add_u32 s16, s4, s20")
    A("    s_addc_u32 s17, s5, 0")
    A("    s_and_b32 s17, s17, 0xffff")
    A("    s_mov_b32 s18, 0x200000")
    A("    s_mov_b32 s19, 0x00020000")
    A("    s_add_u32 s24, s6, s20")
    A("    s_addc_u32 s25, s7, 0")
    A("    s_and_b32 s25, s25, 0xffff")
    A("    s_mov_b32 s26, 0x200000")
    A("    s_mov_b32 s27, 0x00020000")
    A("    s_lshl_b32 s20, s14, 10")
    A("    s_add_u32 s28, s12, s20")
    A("    s_addc_u32 s29, s13, 0")
    A("    s_and_b32 s29, s29, 0xffff")
    A("    s_movk_i32 s30, 1024")
    A("    s_mov_b32 s31, 0x00020000")
    A("    s_mov_b32 s32, s12")
    A("    s_and_b32 s33, s13, 0xffff")
    A("    s_mov_b32 s34, 0x100000")
    A("    s_mov_b32 s35, 0x00020000")
    A("    v_and_b32 v1, 63, v0")
    A("    v_lshrrev_b32 v2, 6, v0")
    A("    v_and_b32 v3, 15, v1")
    A("    v_lshrrev_b32 v4, 4, v1")
    A("    v_lshlrev_b32 v5, 9, v3")
    A("    v_lshl_add_u32 v5, v4, 4, v5")
    for j in range(8):
        A(f"    buffer_load_dwordx4 v[{8+4*j}:{11+4*j}], v5, s[28:31], 0 offen offset:{j*64}")
    A("    s_lshl_b32 s20, s15, 16")
    A("    v_lshlrev_b32 v6, 14, v2")
    A("    v_add_u32 v6, v6, v5")
    A("    v_add_u32 v6, s20, v6")
    A("    s_movk_i32 s21, 8192")
    for t in range(2):
        for j in range(8):
            r = 40 + (t*8+j)*4
            so = "s21" if t else "0"
            A(f"    buffer_load_dwordx4 v[{r}:{r+3}], v6, s[16:19], {so} offen offset:{j*64} sc1 nt")
    A("    v_lshrrev_b32 v7, 5, v1")
    A("    v_lshlrev_b32 v7, 9, v7")
    A("    v_and_b32 v192, 31, v1")
    A("    v_lshl_add_u32 v7, v192, 4, v7")
    A("    v_lshlrev_b32 v192, 14, v2")
    A("    v_add_u32 v7, v7, v192")
    A("    v_add_u32 v7, s20, v7")
    A("    s_mov_b32 s22, 0")
    for i in range(16):
        r = 104 + 4*i
        A(f"    buffer_load_dwordx4 v[{r}:{r+3}], v7, s[24:27], s22 offen sc1 nt")
        A("    s_add_u32 s22, s22, 1024")
    for r in range(8):
        A(f"    v_mov_b32 v{168+r}, 0")
    A("    s_waitcnt vmcnt(16)")
    for t in range(2):
        for j in range(8):
            r = 40 + (t*8+j)*4
            A(f"    v_mfma_f32_16x16x32_bf16 v[{168+4*t}:{171+4*t}], v[{r}:{r+3}], v[{8+4*j}:{11+4*j}], v[{168+4*t}:{171+4*t}]")
    A("    s_nop 7")
    A("    s_nop 1")
    for r in range(8):
        A(f"    v_mul_f32 v{168+r}, 0x3db8aa3b, v{168+r}")
    A("    v_max3_f32 v192, v168, v169, v170")
    A("    v_max3_f32 v192, v192, v171, v172")
    A("    v_max3_f32 v192, v192, v173, v174")
    A("    v_max_f32 v192, v192, v175")
    A("    v_xor_b32 v193, 16, v1")
    A("    v_lshlrev_b32 v193, 2, v193")
    A("    v_xor_b32 v194, 32, v1")
    A("    v_lshlrev_b32 v194, 2, v194")
    A("    ds_bpermute_b32 v195, v193, v192")
    A("    s_waitcnt lgkmcnt(0)")
    A("    v_max_f32 v192, v192, v195")
    A("    ds_bpermute_b32 v195, v194, v192")
    A("    s_waitcnt lgkmcnt(0)")
    A("    v_max_f32 v192, v192, v195")
    A("    v_lshlrev_b32 v195, 3, v2")
    A("    v_lshl_add_u32 v195, v1, 2, v195")
    A("    v_cmp_gt_u32 vcc, 2, v1")
    A("    s_and_saveexec_b64 s[40:41], vcc")
    A("    ds_write_b32 v195, v192")
    A("    s_mov_b64 exec, s[40:41]")
    A("    s_waitcnt lgkmcnt(0)")
    A("    s_barrier")
    A("    v_and_b32 v195, 1, v1")
    A("    v_lshlrev_b32 v195, 2, v195")
    A("    ds_read_b32 v196, v195")
    A("    ds_read_b32 v197, v195 offset:8")
    A("    ds_read_b32 v198, v195 offset:16")
    A("    ds_read_b32 v199, v195 offset:24")
    A("    s_waitcnt lgkmcnt(0)")
    A("    v_max3_f32 v192, v196, v197, v198")
    A("    v_max_f32 v192, v192, v199")
    for r in range(8):
        A(f"    v_sub_f32 v{168+r}, v{168+r}, v192")
        A(f"    v_exp_f32 v{168+r}, v{168+r}")
    A("    s_nop 0")
    A("    v_add_f32 v196, v168, v169")
    for r in range(2, 8):
        A(f"    v_add_f32 v196, v196, v{168+r}")
    A("    v_lshlrev_b32 v195, 8, v2")
    A("    v_lshl_add_u32 v195, v4, 5, v195")
    A("    v_lshl_add_u32 v195, v3, 2, v195")
    A("    v_cmp_gt_u32 vcc, 2, v3")
    A("    s_and_saveexec_b64 s[40:41], vcc")
    for t in range(2):
        for r in range(4):
            A(f"    ds_write_b32 v195, v{168+4*t+r} offset:{64 + (t*16+r)*8}")
    A("    v_lshlrev_b32 v197, 5, v2")
    A("    v_lshl_add_u32 v197, v4, 3, v197")
    A("    v_lshl_add_u32 v197, v3, 2, v197")
    A("    ds_write_b32 v197, v196 offset:2048")
    A("    s_mov_b64 exec, s[40:41]")
    A("    s_waitcnt lgkmcnt(0)")
    A("    v_lshrrev_b32 v195, 5, v1")
    A("    v_lshlrev_b32 v195, 3, v195")
    A("    v_lshl_add_u32 v195, v2, 8, v195")
    for i in range(16):
        A(f"    ds_read_b64 v[{200+2*i}:{201+2*i}], v195 offset:{64+16*i}")
    for r in range(16):
        A(f"    v_mov_b32 v{176+r}, 0")
    A("    s_waitcnt lgkmcnt(0)")
    for i in range(16):
        A(f"    s_waitcnt vmcnt({15-i})")
        for d in range(4):
            r = 104 + 4*i + d
            A(f"    v_lshlrev_b32 v196, 16, v{r}")
            A(f"    v_and_b32 v197, 0xffff0000, v{r}")
            A(f"    v_fmac_f32 v{176+2*d}, v{200+2*i}, v196")
            A(f"    v_fmac_f32 v{177+2*d}, v{200+2*i}, v197")
            A(f"    v_fmac_f32 v{184+2*d}, v{201+2*i}, v196")
            A(f"    v_fmac_f32 v{185+2*d}, v{201+2*i}, v197")
    A("    v_lshrrev_b32 v195, 5, v1")
    A("    v_lshl_add_u32 v195, v2, 1, v195")
    A("    v_lshlrev_b32 v195, 11, v195")
    A("    v_and_b32 v196, 31, v1")
    A("    v_lshl_add_u32 v195, v196, 5, v195")
    A("    ds_write_b128 v195, v[176:179] offset:4096")
    A("    ds_write_b128 v195, v[180:183] offset:4112")
    A("    ds_write_b128 v195, v[184:187] offset:5120")
    A("    ds_write_b128 v195, v[188:191] offset:5136")
    A("    s_waitcnt lgkmcnt(0)")
    A("    s_barrier")
    A("    v_lshlrev_b32 v195, 2, v0")
    for q in range(2):
        for p in range(8):
            A(f"    ds_read_b32 v{200+q*8+p}, v195 offset:{4096 + p*2048 + q*1024}")
    A("    v_and_b32 v196, 1, v0")
    A("    v_lshlrev_b32 v196, 2, v196")
    for p in range(16):
        A(f"    ds_read_b32 v{216+p}, v196 offset:{2048 + p*8}")
    A("    s_waitcnt lgkmcnt(0)")
    for q in range(2):
        for p in range(1, 8):
            A(f"    v_add_f32 v{200+q*8}, v{200+q*8}, v{200+q*8+p}")
    for p in range(1, 16):
        A(f"    v_add_f32 v216, v216, v{216+p}")
    A("    s_lshl_b32 s20, s14, 6")
    A("    s_add_u32 s20, s20, s15")
    A("    s_lshl_b32 s21, s20, 10")
    A("    s_add_u32 s21, s21, %d" % WS_PO)
    A("    buffer_store_dword v200, v195, s[32:35], s21 offen")
    A("    s_add_u32 s21, s21, 32768")
    A("    buffer_store_dword v208, v195, s[32:35], s21 offen")
    A("    v_cmp_gt_u32 vcc, 2, v0")
    A("    s_and_saveexec_b64 s[40:41], vcc")
    A("    s_cbranch_execz K2_END")
    A("    v_lshlrev_b32 v195, 7, v0")
    A("    s_lshl_b32 s21, s20, 2")
    A("    s_add_u32 s22, s21, %d" % WS_PM)
    A("    s_add_u32 s23, s21, %d" % WS_PL)
    A("    buffer_store_dword v192, v195, s[32:35], s22 offen")
    A("    buffer_store_dword v216, v195, s[32:35], s23 offen")
    A("K2_END:")
    A("    s_endpgm")

def k3():
    A(".globl k3_kernel")
    A(".p2align 8")
    A(".type k3_kernel,@function")
    A("k3_kernel:")
    A("    s_cmp_ge_u32 s2, 92")
    A("    s_cbranch_scc1 K3_END")
    A("    s_load_dwordx2 s[4:5], s[0:1], 0")
    A("    s_load_dwordx2 s[6:7], s[0:1], 32")
    A("    s_load_dwordx2 s[8:9], s[0:1], 64")
    A("    s_load_dwordx2 s[10:11], s[0:1], 72")
    A("    s_load_dwordx2 s[12:13], s[0:1], 88")
    A("    s_load_dwordx2 s[14:15], s[0:1], 80")
    A("    s_waitcnt lgkmcnt(0)")
    A("    s_cmp_lt_u32 s2, 64")
    A("    s_cselect_b32 s20, s6, s8")
    A("    s_cselect_b32 s21, s7, s9")
    A("    s_cselect_b32 s22, 0, 64")
    A("    s_sub_u32 s22, s2, s22")
    A("    s_mul_i32 s23, s22, 57344")
    A("    s_add_u32 s16, s20, s23")
    A("    s_addc_u32 s17, s21, 0")
    A("    s_and_b32 s17, s17, 0xffff")
    A("    s_mov_b32 s18, 57344")
    A("    s_mov_b32 s19, 0x00020000")
    A("    s_mov_b32 s24, s12")
    A("    s_and_b32 s25, s13, 0xffff")
    A("    s_mov_b32 s26, 0x100000")
    A("    s_mov_b32 s27, 0x00020000")
    A("    v_lshlrev_b32 v1, 4, v0")
    A("    s_mov_b32 s28, 0")
    for it in range(8):
        A(f"    buffer_load_dwordx4 v[{64+4*it}:{67+4*it}], v1, s[16:19], s28 offen sc1 nt")
        A("    s_add_u32 s28, s28, 7168")
    A("    v_cmp_gt_u32 vcc, 64, v0")
    A("    s_and_saveexec_b64 s[40:41], vcc")
    A("    s_cbranch_execz K3_COEF_DONE")
    A("    s_cmp_lt_u32 s2, 64")
    A("    s_cbranch_scc0 K3_HCOEF")
    A("    s_lshr_b32 s29, s2, 2")
    A("    s_and_b32 s30, s2, 3")
    A("    s_lshl_b32 s31, s29, 7")
    A("    s_add_u32 s32, s31, %d" % WS_PM)
    A("    s_add_u32 s33, s31, %d" % WS_PL)
    A("    v_mov_b32 v2, 0")
    A("    s_lshl_b32 s34, s29, 15")
    A("    s_lshl_b32 s35, s30, 8")
    A("    s_add_u32 s34, s34, s35")
    A("    s_add_u32 s34, s34, %d" % WS_PO)
    A("    v_lshlrev_b32 v3, 2, v0")
    for s in range(32):
        A(f"    buffer_load_dword v{100+s}, v2, s[24:27], s32 offen offset:{4*s}")
        A(f"    buffer_load_dword v{132+s}, v2, s[24:27], s33 offen offset:{4*s}")
    A("    s_waitcnt vmcnt(0)")
    for s in range(32):
        A(f"    buffer_load_dword v{164+s}, v3, s[24:27], s34 offen")
        A("    s_add_u32 s34, s34, 1024")
    A("    v_max_f32 v4, v100, v101")
    for s in range(2, 32):
        A(f"    v_max_f32 v4, v4, v{100+s}")
    A("    v_mov_b32 v5, 0")
    for s in range(32):
        A(f"    v_sub_f32 v{100+s}, v{100+s}, v4")
        A(f"    v_exp_f32 v{100+s}, v{100+s}")
        A("    s_nop 0")
        A(f"    v_fmac_f32 v5, v{100+s}, v{132+s}")
    A("    v_mov_b32 v6, 0")
    A("    s_waitcnt vmcnt(0)")
    for s in range(32):
        A(f"    v_fmac_f32 v6, v{100+s}, v{164+s}")
    A("    v_rcp_f32 v5, v5")
    A("    s_nop 0")
    A("    v_mul_f32 v6, v6, v5")
    bf16r("v6", "v7")
    A("    s_branch K3_COEF_ST")
    A("K3_HCOEF:")
    A("    s_sub_u32 s29, s2, 64")
    A("    s_lshl_b32 s29, s29, 8")
    A("    s_add_u32 s30, s29, %d" % WS_G)
    A("    s_add_u32 s31, s29, %d" % WS_U)
    A("    v_lshlrev_b32 v3, 2, v0")
    A("    buffer_load_dword v4, v3, s[24:27], s30 offen")
    A("    buffer_load_dword v5, v3, s[24:27], s31 offen")
    A("    s_waitcnt vmcnt(0)")
    A("    v_mul_f32 v4, 0xbfb8aa3b, v4")
    A("    v_exp_f32 v4, v4")
    A("    s_nop 0")
    A("    v_add_f32 v4, 1.0, v4")
    A("    v_rcp_f32 v4, v4")
    A("    s_nop 0")
    bf16r("v4", "v7")
    A("    v_mul_f32 v6, v4, v5")
    bf16r("v6", "v7")
    A("K3_COEF_ST:")
    A("    v_lshlrev_b32 v3, 2, v0")
    A("    ds_write_b32 v3, v6")
    A("K3_COEF_DONE:")
    A("    s_mov_b64 exec, s[40:41]")
    A("    s_waitcnt lgkmcnt(0)")
    A("    s_barrier")
    A("    v_mul_u32_u24 v2, 1171, v0")
    A("    v_lshrrev_b32 v2, 16, v2")
    A("    v_lshlrev_b32 v3, 2, v2")
    for it in range(8):
        A(f"    ds_read_b32 v{8+it}, v3 offset:{it*32}")
    for c in range(8):
        A(f"    v_mov_b32 v{16+c}, 0")
    A("    s_waitcnt lgkmcnt(0)")
    A("    s_waitcnt vmcnt(0)")
    for it in range(8):
        for d in range(4):
            r = 64 + 4*it + d
            A(f"    v_lshlrev_b32 v24, 16, v{r}")
            A(f"    v_and_b32 v25, 0xffff0000, v{r}")
            A(f"    v_fmac_f32 v{16+2*d}, v{8+it}, v24")
            A(f"    v_fmac_f32 v{17+2*d}, v{8+it}, v25")
    A("    v_lshlrev_b32 v3, 5, v0")
    A("    ds_write_b128 v3, v[16:19] offset:1024")
    A("    ds_write_b128 v3, v[20:23] offset:1040")
    A("    s_waitcnt lgkmcnt(0)")
    A("    s_barrier")
    A("    v_lshlrev_b32 v3, 2, v0")
    for g in range(8):
        A(f"    ds_read_b32 v{8+g}, v3 offset:{1024+g*1792}")
    A("    s_waitcnt lgkmcnt(0)")
    for g in range(1, 8):
        A(f"    v_add_f32 v8, v8, v{8+g}")
    A("    s_mul_i32 s28, s2, 1792")
    A("    s_add_u32 s28, s28, %d" % WS_OP)
    A("    buffer_store_dword v8, v3, s[24:27], s28 offen sc1")
    A("    s_waitcnt vmcnt(0)")
    A("    s_barrier")
    A("    v_cmp_eq_u32 vcc, 0, v0")
    A("    s_and_saveexec_b64 s[40:41], vcc")
    A("    v_mov_b32 v4, 0")
    A("    v_mov_b32 v5, 1")
    A("    global_atomic_add v6, v4, v5, s[14:15] sc0")
    A("    s_waitcnt vmcnt(0)")
    A("    v_mov_b32 v4, 0")
    A("    ds_write_b32 v4, v6 offset:16384")
    A("    s_mov_b64 exec, s[40:41]")
    A("    s_waitcnt lgkmcnt(0)")
    A("    s_barrier")
    A("    v_mov_b32 v4, 0")
    A("    ds_read_b32 v6, v4 offset:16384")
    A("    s_waitcnt lgkmcnt(0)")
    A("    v_readfirstlane_b32 s29, v6")
    A("    s_cmp_eq_u32 s29, 91")
    A("    s_cbranch_scc0 K3_END")
    A("    s_mov_b32 s28, %d" % WS_OP)
    for b in range(92):
        A(f"    buffer_load_dword v{64+b}, v3, s[24:27], s28 offen sc1")
        A("    s_add_u32 s28, s28, 1792")
    A("    s_mov_b32 s32, s4")
    A("    s_and_b32 s33, s5, 0xffff")
    A("    s_movk_i32 s34, 896")
    A("    s_mov_b32 s35, 0x00020000")
    A("    v_lshlrev_b32 v4, 1, v0")
    A("    buffer_load_ushort v5, v4, s[32:35], 0 offen")
    A("    s_waitcnt vmcnt(0)")
    A("    v_lshlrev_b32 v5, 16, v5")
    for b in range(1, 64):
        A(f"    v_add_f32 v64, v64, v{64+b}")
    for b in range(65, 92):
        A(f"    v_add_f32 v128, v128, v{64+b}")
    bf16r("v64", "v7")
    bf16r("v128", "v7")
    A("    v_add_f32 v5, v5, v64")
    bf16r("v5", "v7")
    A("    v_add_f32 v5, v5, v128")
    A("    v_cvt_pk_bf16_f32 v5, v5, v5")
    A("    s_mov_b32 s32, s10")
    A("    s_and_b32 s33, s11, 0xffff")
    A("    s_movk_i32 s34, 896")
    A("    s_mov_b32 s35, 0x00020000")
    A("    buffer_store_short v5, v4, s[32:35], 0 offen")
    A("K3_END:")
    A("    s_endpgm")

def desc(name, vgpr, sgpr):
    A(".p2align 6")
    A(f".amdhsa_kernel {name}")
    A(f"  .amdhsa_next_free_vgpr {vgpr}")
    A(f"  .amdhsa_next_free_sgpr {sgpr}")
    A(f"  .amdhsa_accum_offset {((vgpr+3)//4)*4}")
    A("  .amdhsa_group_segment_fixed_size 0")
    A("  .amdhsa_kernarg_size 96")
    A("  .amdhsa_user_sgpr_count 2")
    A("  .amdhsa_user_sgpr_kernarg_segment_ptr 1")
    A("  .amdhsa_system_sgpr_workgroup_id_x 1")
    A(".end_amdhsa_kernel")

A("; @launch kernel=k1_kernel grid=(120,1,1) block=(256,1,1) lds=16384")
A("; @launch kernel=k2_kernel grid=(256,1,1) block=(256,1,1) lds=20480")
A("; @launch kernel=k3_kernel grid=(92,1,1) block=(448,1,1) lds=20480")
A('.amdgcn_target "amdgcn-amd-amdhsa--gfx950"')
A(".text")
k1()
k2()
k3()
A('.section .rodata,"a"')
desc("k1_kernel", 128, 64)
desc("k2_kernel", 240, 64)
desc("k3_kernel", 200, 64)
open(sys.argv[1] if len(sys.argv) > 1 else f"cdna_kernels/{NAME}.s", "w").write("\n".join(L) + "\n")
```

```python
import sys

NAME = "parallel_sum__sliding_block_cached__glu_gated_glu__decode"

WS_Q = 0
WS_G = 8192
WS_U = 16384
WS_PM = 24576
WS_PL = 28672
WS_PO = 32768
WS_OP = 32768 + 524288

L = []
def A(s=""):
    L.append(s)

def bf16r(v, tmp):
    A(f"    v_cvt_pk_bf16_f32 {tmp}, {v}, {v}")
    A(f"    v_lshlrev_b32 {v}, 16, {tmp}")

def ka():
    A(".globl ka_kernel")
    A(".p2align 8")
    A(".type ka_kernel,@function")
    A("ka_kernel:")
    A("    s_cmp_ge_u32 s2, 376")
    A("    s_cbranch_scc1 KA_END")
    A("    s_cmp_ge_u32 s2, 120")
    A("    s_cbranch_scc1 KA_ATT")
    A("    v_lshrrev_b32 v2, 6, v0")
    A("    v_readfirstlane_b32 s3, v2")
    A("    s_load_dwordx2 s[4:5], s[0:1], 0")
    A("    s_load_dwordx2 s[6:7], s[0:1], 24")
    A("    s_load_dwordx2 s[8:9], s[0:1], 48")
    A("    s_load_dwordx2 s[10:11], s[0:1], 56")
    A("    s_load_dwordx2 s[12:13], s[0:1], 88")
    A("    s_load_dwordx2 s[14:15], s[0:1], 80")
    A("    s_waitcnt lgkmcnt(0)")
    A("    s_cmp_lt_u32 s2, 64")
    A("    s_cbranch_scc0 KA_NOTQ")
    A("    s_lshl_b32 s21, s2, 6")
    A("    s_movk_i32 s22, 8192")
    A("    s_mov_b64 s[24:25], s[6:7]")
    A("    s_lshl_b32 s26, s21, 1")
    A("    s_add_u32 s26, s26, %d" % WS_Q)
    A("    s_mov_b32 s20, 0")
    A("    s_branch KA_SEL")
    A("KA_NOTQ:")
    A("    s_cmp_lt_u32 s2, 92")
    A("    s_cbranch_scc0 KA_UP")
    A("    s_sub_u32 s21, s2, 64")
    A("    s_lshl_b32 s21, s21, 6")
    A("    s_movk_i32 s22, 3584")
    A("    s_mov_b64 s[24:25], s[8:9]")
    A("    s_lshl_b32 s26, s21, 2")
    A("    s_add_u32 s26, s26, %d" % WS_G)
    A("    s_mov_b32 s20, 1")
    A("    s_branch KA_SEL")
    A("KA_UP:")
    A("    s_sub_u32 s21, s2, 92")
    A("    s_lshl_b32 s21, s21, 6")
    A("    s_movk_i32 s22, 3584")
    A("    s_mov_b64 s[24:25], s[10:11]")
    A("    s_lshl_b32 s26, s21, 2")
    A("    s_add_u32 s26, s26, %d" % WS_U)
    A("    s_mov_b32 s20, 1")
    A("KA_SEL:")
    A("    s_lshl_b32 s27, s21, 1")
    A("    s_add_u32 s28, s24, s27")
    A("    s_addc_u32 s29, s25, 0")
    A("    s_and_b32 s29, s29, 0xffff")
    A("    s_mul_i32 s30, s22, 448")
    A("    s_sub_u32 s30, s30, s27")
    A("    s_mov_b32 s31, 0x00020000")
    A("    s_mov_b32 s32, s4")
    A("    s_and_b32 s33, s5, 0xffff")
    A("    s_movk_i32 s34, 896")
    A("    s_mov_b32 s35, 0x00020000")
    A("    s_mov_b32 s36, s12")
    A("    s_and_b32 s37, s13, 0xffff")
    A("    s_mov_b32 s38, 0x100000")
    A("    s_mov_b32 s39, 0x00020000")
    A("    v_and_b32 v1, 63, v0")
    A("    v_lshrrev_b32 v3, 3, v1")
    A("    v_and_b32 v4, 7, v1")
    A("    v_mul_u32_u24 v5, 56, v2")
    A("    v_add_u32 v5, v5, v3")
    A("    v_mul_lo_u32 v6, v5, s22")
    A("    v_lshl_add_u32 v6, v4, 4, v6")
    A("    s_lshl_b32 s40, s22, 3")
    A("    s_mov_b32 s41, 0")
    for i in range(7):
        A(f"    buffer_load_dwordx4 v[{64+4*i}:{67+4*i}], v6, s[28:31], s41 offen sc1 nt")
        A("    s_add_u32 s41, s41, s40")
    A("    v_lshlrev_b32 v7, 4, v1")
    A("    buffer_load_dwordx4 v[8:11], v7, s[32:35], 0 offen")
    for n, m in enumerate((1, 2, 4, 8, 16, 32)):
        A(f"    v_xor_b32 v{20+n}, {m}, v1")
        A(f"    v_lshlrev_b32 v{20+n}, 2, v{20+n}")
    A("    s_waitcnt vmcnt(0)")
    for d in range(4):
        A(f"    v_lshlrev_b32 v{12+2*d}, 16, v{8+d}")
        A(f"    v_and_b32 v{13+2*d}, 0xffff0000, v{8+d}")
    A("    v_add_f32 v26, v12, v13")
    for d in range(2, 8):
        A(f"    v_add_f32 v26, v26, v{12+d}")
    def wave_sum(v):
        for n in range(6):
            A(f"    ds_bpermute_b32 v27, v{20+n}, {v}")
            A("    s_waitcnt lgkmcnt(0)")
            A(f"    v_add_f32 {v}, {v}, v27")
    wave_sum("v26")
    A("    v_mul_f32 v26, 0x3b124925, v26")
    A("    v_mov_b32 v28, 0")
    for d in range(8):
        A(f"    v_sub_f32 v29, v{12+d}, v26")
        A("    v_fmac_f32 v28, v29, v29")
    A("    v_cmp_gt_u32 vcc, 56, v1")
    A("    s_nop 1")
    A("    v_cndmask_b32 v28, 0, v28, vcc")
    wave_sum("v28")
    A("    v_mul_f32 v28, 0x3b124925, v28")
    bf16r("v26", "v29")
    bf16r("v28", "v29")
    A("    v_add_f32 v28, 0x3727c5ac, v28")
    bf16r("v28", "v29")
    A("    v_sqrt_f32 v28, v28")
    A("    s_nop 0")
    bf16r("v28", "v29")
    A("    v_rcp_f32 v28, v28")
    A("    s_nop 0")
    for d in range(8):
        A(f"    v_sub_f32 v{12+d}, v{12+d}, v26")
        bf16r(f"v{12+d}", "v29")
        A(f"    v_mul_f32 v{12+d}, v{12+d}, v28")
        bf16r(f"v{12+d}", "v29")
    A("    v_mul_u32_u24 v30, 1792, v2")
    A("    v_lshl_add_u32 v31, v1, 5, v30")
    A("    v_cmp_gt_u32 vcc, 56, v1")
    A("    s_and_saveexec_b64 s[42:43], vcc")
    A("    ds_write_b128 v31, v[12:15]")
    A("    ds_write_b128 v31, v[16:19] offset:16")
    A("    s_mov_b64 exec, s[42:43]")
    A("    s_waitcnt lgkmcnt(0)")
    A("    v_lshl_add_u32 v31, v5, 2, v30")
    for i in range(7):
        A(f"    ds_read_b32 v{32+i}, v31 offset:{i*32}")
    for c in range(8):
        A(f"    v_mov_b32 v{48+c}, 0")
    A("    s_waitcnt lgkmcnt(0)")
    for i in range(7):
        for d in range(4):
            A(f"    v_lshlrev_b32 v56, 16, v{64+4*i+d}")
            A(f"    v_and_b32 v57, 0xffff0000, v{64+4*i+d}")
            A(f"    v_fmac_f32 v{48+2*d}, v{32+i}, v56")
            A(f"    v_fmac_f32 v{49+2*d}, v{32+i}, v57")
    A("    v_lshl_add_u32 v31, v2, 3, v3")
    A("    v_lshlrev_b32 v31, 8, v31")
    A("    v_lshl_add_u32 v31, v4, 5, v31")
    A("    ds_write_b128 v31, v[48:51] offset:16384")
    A("    ds_write_b128 v31, v[52:55] offset:16400")
    A("    s_waitcnt lgkmcnt(0)")
    A("    s_barrier")
    A("    v_cmp_gt_u32 vcc, 64, v0")
    A("    s_and_saveexec_b64 s[42:43], vcc")
    A("    s_cbranch_execz KA_END")
    A("    v_lshlrev_b32 v31, 2, v0")
    for g in range(64):
        A(f"    ds_read_b32 v{64+g}, v31 offset:{16384+g*256}")
    A("    s_waitcnt lgkmcnt(0)")
    for g in range(1, 64):
        A(f"    v_add_f32 v64, v64, v{64+g}")
    A("    v_cvt_pk_bf16_f32 v65, v64, v64")
    A("    s_cmp_eq_u32 s20, 0")
    A("    s_cbranch_scc0 KA_F32")
    A("    v_lshlrev_b32 v31, 1, v0")
    A("    buffer_store_short v65, v31, s[36:39], s26 offen sc1")
    A("    s_waitcnt vmcnt(0)")
    A("    v_cmp_eq_u32 vcc, 0, v0")
    A("    s_and_saveexec_b64 s[42:43], vcc")
    A("    s_lshr_b32 s27, s2, 3")
    A("    s_lshl_b32 s27, s27, 2")
    A("    v_mov_b32 v4, s27")
    A("    v_mov_b32 v5, 1")
    A("    global_atomic_add v4, v5, s[14:15] sc1")
    A("    s_branch KA_END")
    A("KA_F32:")
    A("    v_lshlrev_b32 v65, 16, v65")
    A("    v_lshlrev_b32 v31, 2, v0")
    A("    buffer_store_dword v65, v31, s[36:39], s26 offen")
    A("    s_branch KA_END")
    A("KA_ATT:")
    A("    s_load_dwordx2 s[4:5], s[0:1], 8")
    A("    s_load_dwordx2 s[6:7], s[0:1], 16")
    A("    s_load_dwordx2 s[12:13], s[0:1], 88")
    A("    s_load_dwordx2 s[10:11], s[0:1], 80")
    A("    s_sub_u32 s2, s2, 120")
    A("    s_lshr_b32 s14, s2, 5")
    A("    s_and_b32 s15, s2, 31")
    A("    v_and_b32 v1, 63, v0")
    A("    v_lshrrev_b32 v2, 6, v0")
    A("    v_and_b32 v3, 15, v1")
    A("    v_lshrrev_b32 v4, 4, v1")
    A("    v_readfirstlane_b32 s3, v2")
    A("    s_waitcnt lgkmcnt(0)")
    A("    s_cmp_eq_u32 s3, 0")
    A("    s_cbranch_scc1 KA_POLL")
    A("KA_LOADS:")
    A("    s_lshl_b32 s20, s14, 25")
    A("    s_add_u32 s20, s20, 31457280")
    A("    s_add_u32 s16, s4, s20")
    A("    s_addc_u32 s17, s5, 0")
    A("    s_and_b32 s17, s17, 0xffff")
    A("    s_mov_b32 s18, 0x200000")
    A("    s_mov_b32 s19, 0x00020000")
    A("    s_add_u32 s24, s6, s20")
    A("    s_addc_u32 s25, s7, 0")
    A("    s_and_b32 s25, s25, 0xffff")
    A("    s_mov_b32 s26, 0x200000")
    A("    s_mov_b32 s27, 0x00020000")
    A("    s_mov_b32 s32, s12")
    A("    s_and_b32 s33, s13, 0xffff")
    A("    s_mov_b32 s34, 0x100000")
    A("    s_mov_b32 s35, 0x00020000")
    A("    s_lshl_b32 s20, s15, 16")
    A("    v_lshlrev_b32 v5, 9, v3")
    A("    v_lshl_add_u32 v5, v4, 4, v5")
    A("    v_lshlrev_b32 v6, 13, v2")
    A("    v_add_u32 v6, v6, v5")
    A("    v_add_u32 v6, s20, v6")
    for j in range(8):
        r = 40 + j*4
        A(f"    buffer_load_dwordx4 v[{r}:{r+3}], v6, s[16:19], 0 offen offset:{j*64} sc1 nt")
    A("    v_lshrrev_b32 v7, 5, v1")
    A("    v_lshlrev_b32 v7, 9, v7")
    A("    v_and_b32 v124, 31, v1")
    A("    v_lshl_add_u32 v7, v124, 4, v7")
    A("    v_lshlrev_b32 v124, 13, v2")
    A("    v_add_u32 v7, v7, v124")
    A("    v_add_u32 v7, s20, v7")
    for i in range(8):
        r = 72 + 4*i
        A(f"    s_movk_i32 s22, {i*1024}")
        A(f"    buffer_load_dwordx4 v[{r}:{r+3}], v7, s[24:27], s22 offen sc1 nt")
    A("    s_barrier")
    A("    v_min_u32 v5, 2, v3")
    A("    v_lshlrev_b32 v5, 9, v5")
    A("    v_lshl_add_u32 v5, v4, 4, v5")
    for j in range(8):
        A(f"    ds_read_b128 v[{8+4*j}:{11+4*j}], v5 offset:{j*64}")
    for r in range(4):
        A(f"    v_mov_b32 v{104+r}, 0")
    A("    s_waitcnt lgkmcnt(0)")
    A("    s_waitcnt vmcnt(8)")
    for j in range(8):
        r = 40 + j*4
        A(f"    v_mfma_f32_16x16x32_bf16 v[104:107], v[{r}:{r+3}], v[{8+4*j}:{11+4*j}], v[104:107]")
    A("    s_nop 7")
    A("    s_nop 1")
    for r in range(4):
        A(f"    v_mul_f32 v{104+r}, 0x3db8aa3b, v{104+r}")
    A("    v_max3_f32 v124, v104, v105, v106")
    A("    v_max_f32 v124, v124, v107")
    A("    v_xor_b32 v125, 16, v1")
    A("    v_lshlrev_b32 v125, 2, v125")
    A("    v_xor_b32 v126, 32, v1")
    A("    v_lshlrev_b32 v126, 2, v126")
    A("    ds_bpermute_b32 v127, v125, v124")
    A("    s_waitcnt lgkmcnt(0)")
    A("    v_max_f32 v124, v124, v127")
    A("    ds_bpermute_b32 v127, v126, v124")
    A("    s_waitcnt lgkmcnt(0)")
    A("    v_max_f32 v124, v124, v127")
    A("    v_lshlrev_b32 v127, 3, v2")
    A("    v_lshl_add_u32 v127, v1, 2, v127")
    A("    v_cmp_gt_u32 vcc, 2, v1")
    A("    s_and_saveexec_b64 s[40:41], vcc")
    A("    ds_write_b32 v127, v124 offset:2048")
    A("    s_mov_b64 exec, s[40:41]")
    A("    s_waitcnt lgkmcnt(0)")
    A("    s_barrier")
    A("    v_and_b32 v127, 1, v1")
    A("    v_lshlrev_b32 v127, 2, v127")
    for w in range(8):
        A(f"    ds_read_b32 v{64+w}, v127 offset:{2048+8*w}")
    A("    s_waitcnt lgkmcnt(0)")
    A("    v_max3_f32 v124, v64, v65, v66")
    A("    v_max3_f32 v124, v124, v67, v68")
    A("    v_max3_f32 v124, v124, v69, v70")
    A("    v_max_f32 v124, v124, v71")
    for r in range(4):
        A(f"    v_sub_f32 v{104+r}, v{104+r}, v124")
        A(f"    v_exp_f32 v{104+r}, v{104+r}")
    A("    s_nop 0")
    A("    v_add_f32 v60, v104, v105")
    A("    v_add_f32 v60, v60, v106")
    A("    v_add_f32 v60, v60, v107")
    A("    v_lshlrev_b32 v127, 7, v2")
    A("    v_lshl_add_u32 v127, v4, 5, v127")
    A("    v_lshl_add_u32 v127, v3, 2, v127")
    A("    v_cmp_gt_u32 vcc, 2, v3")
    A("    s_and_saveexec_b64 s[40:41], vcc")
    for r in range(4):
        A(f"    ds_write_b32 v127, v{104+r} offset:{4096 + r*8}")
    A("    v_lshlrev_b32 v61, 5, v2")
    A("    v_lshl_add_u32 v61, v4, 3, v61")
    A("    v_lshl_add_u32 v61, v3, 2, v61")
    A("    ds_write_b32 v61, v60 offset:6144")
    A("    s_mov_b64 exec, s[40:41]")
    A("    s_waitcnt lgkmcnt(0)")
    A("    v_lshrrev_b32 v127, 5, v1")
    A("    v_lshlrev_b32 v127, 3, v127")
    A("    v_lshl_add_u32 v127, v2, 7, v127")
    for i in range(8):
        A(f"    ds_read_b64 v[{8+2*i}:{9+2*i}], v127 offset:{4096+16*i}")
    for r in range(16):
        A(f"    v_mov_b32 v{108+r}, 0")
    A("    s_waitcnt lgkmcnt(0)")
    for i in range(8):
        A(f"    s_waitcnt vmcnt({7-i})")
        for d in range(4):
            r = 72 + 4*i + d
            A(f"    v_lshlrev_b32 v60, 16, v{r}")
            A(f"    v_and_b32 v61, 0xffff0000, v{r}")
            A(f"    v_fmac_f32 v{108+2*d}, v{8+2*i}, v60")
            A(f"    v_fmac_f32 v{109+2*d}, v{8+2*i}, v61")
            A(f"    v_fmac_f32 v{116+2*d}, v{9+2*i}, v60")
            A(f"    v_fmac_f32 v{117+2*d}, v{9+2*i}, v61")
    A("    v_lshrrev_b32 v127, 5, v1")
    A("    v_lshl_add_u32 v127, v2, 1, v127")
    A("    v_lshlrev_b32 v127, 11, v127")
    A("    v_and_b32 v60, 31, v1")
    A("    v_lshl_add_u32 v127, v60, 5, v127")
    A("    ds_write_b128 v127, v[108:111] offset:8192")
    A("    ds_write_b128 v127, v[112:115] offset:8208")
    A("    ds_write_b128 v127, v[116:119] offset:9216")
    A("    ds_write_b128 v127, v[120:123] offset:9232")
    A("    s_waitcnt lgkmcnt(0)")
    A("    s_barrier")
    A("    v_lshlrev_b32 v127, 2, v0")
    for p in range(16):
        A(f"    ds_read_b32 v{8+p}, v127 offset:{8192 + p*2048}")
    A("    v_and_b32 v60, 1, v0")
    A("    v_lshlrev_b32 v60, 2, v60")
    for p in range(32):
        A(f"    ds_read_b32 v{24+p}, v60 offset:{6144 + p*8}")
    A("    s_waitcnt lgkmcnt(0)")
    for p in range(1, 16):
        A(f"    v_add_f32 v8, v8, v{8+p}")
    for p in range(1, 32):
        A(f"    v_add_f32 v24, v24, v{24+p}")
    A("    s_lshl_b32 s20, s14, 6")
    A("    s_add_u32 s20, s20, s15")
    A("    s_lshl_b32 s21, s20, 10")
    A("    s_add_u32 s21, s21, %d" % WS_PO)
    A("    v_lshrrev_b32 v60, 8, v0")
    A("    v_lshlrev_b32 v60, 15, v60")
    A("    v_and_b32 v61, 255, v0")
    A("    v_lshl_add_u32 v60, v61, 2, v60")
    A("    buffer_store_dword v8, v60, s[32:35], s21 offen")
    A("    v_cmp_gt_u32 vcc, 2, v0")
    A("    s_and_saveexec_b64 s[40:41], vcc")
    A("    s_cbranch_execz KA_END")
    A("    v_lshlrev_b32 v127, 7, v0")
    A("    s_lshl_b32 s21, s20, 2")
    A("    s_add_u32 s22, s21, %d" % WS_PM)
    A("    s_add_u32 s23, s21, %d" % WS_PL)
    A("    buffer_store_dword v124, v127, s[32:35], s22 offen")
    A("    buffer_store_dword v24, v127, s[32:35], s23 offen")
    A("    s_branch KA_END")
    A("KA_POLL:")
    A("    v_mov_b32 v8, 0")
    A("    v_mov_b32 v9, 0")
    A("    v_mov_b32 v10, 0")
    A("    v_mov_b32 v11, 0")
    A("    v_lshlrev_b32 v5, 4, v1")
    A("    ds_write_b128 v5, v[8:11] offset:1024")
    A("    s_lshl_b32 s20, s14, 2")
    A("    v_mov_b32 v6, s20")
    A("KA_SPIN:")
    A("    global_load_dword v7, v6, s[10:11] sc0 sc1")
    A("    s_waitcnt vmcnt(0)")
    A("    v_readfirstlane_b32 s21, v7")
    A("    s_cmp_ge_u32 s21, 8")
    A("    s_cbranch_scc1 KA_GOT")
    A("    s_sleep 2")
    A("    s_branch KA_SPIN")
    A("KA_GOT:")
    A("    s_lshl_b32 s20, s14, 10")
    A("    s_add_u32 s28, s12, s20")
    A("    s_addc_u32 s29, s13, 0")
    A("    s_and_b32 s29, s29, 0xffff")
    A("    s_movk_i32 s30, 1024")
    A("    s_mov_b32 s31, 0x00020000")
    A("    buffer_load_dwordx4 v[8:11], v5, s[28:31], 0 offen sc0 sc1")
    A("    s_waitcnt vmcnt(0)")
    A("    ds_write_b128 v5, v[8:11]")
    A("    s_waitcnt lgkmcnt(0)")
    A("    s_branch KA_LOADS")
    A("KA_END:")
    A("    s_endpgm")

def k3():
    A(".globl k3_kernel")
    A(".p2align 8")
    A(".type k3_kernel,@function")
    A("k3_kernel:")
    A("    s_cmp_ge_u32 s2, 92")
    A("    s_cbranch_scc1 K3_END")
    A("    s_load_dwordx2 s[4:5], s[0:1], 0")
    A("    s_load_dwordx2 s[6:7], s[0:1], 32")
    A("    s_load_dwordx2 s[8:9], s[0:1], 64")
    A("    s_load_dwordx2 s[10:11], s[0:1], 72")
    A("    s_load_dwordx2 s[12:13], s[0:1], 88")
    A("    s_load_dwordx2 s[14:15], s[0:1], 80")
    A("    s_waitcnt lgkmcnt(0)")
    A("    s_cmp_lt_u32 s2, 64")
    A("    s_cselect_b32 s20, s6, s8")
    A("    s_cselect_b32 s21, s7, s9")
    A("    s_cselect_b32 s22, 0, 64")
    A("    s_sub_u32 s22, s2, s22")
    A("    s_mul_i32 s23, s22, 57344")
    A("    s_add_u32 s16, s20, s23")
    A("    s_addc_u32 s17, s21, 0")
    A("    s_and_b32 s17, s17, 0xffff")
    A("    s_mov_b32 s18, 57344")
    A("    s_mov_b32 s19, 0x00020000")
    A("    s_mov_b32 s24, s12")
    A("    s_and_b32 s25, s13, 0xffff")
    A("    s_mov_b32 s26, 0x100000")
    A("    s_mov_b32 s27, 0x00020000")
    A("    v_lshlrev_b32 v1, 4, v0")
    A("    s_mov_b32 s28, 0")
    for it in range(8):
        A(f"    buffer_load_dwordx4 v[{64+4*it}:{67+4*it}], v1, s[16:19], s28 offen sc1 nt")
        A("    s_add_u32 s28, s28, 7168")
    A("    v_cmp_gt_u32 vcc, 64, v0")
    A("    s_and_saveexec_b64 s[40:41], vcc")
    A("    s_cbranch_execz K3_COEF_DONE")
    A("    s_cmp_lt_u32 s2, 64")
    A("    s_cbranch_scc0 K3_HCOEF")
    A("    s_lshr_b32 s29, s2, 2")
    A("    s_and_b32 s30, s2, 3")
    A("    s_lshl_b32 s31, s29, 7")
    A("    s_add_u32 s32, s31, %d" % WS_PM)
    A("    s_add_u32 s33, s31, %d" % WS_PL)
    A("    v_mov_b32 v2, 0")
    A("    s_lshl_b32 s34, s29, 15")
    A("    s_lshl_b32 s35, s30, 8")
    A("    s_add_u32 s34, s34, s35")
    A("    s_add_u32 s34, s34, %d" % WS_PO)
    A("    v_lshlrev_b32 v3, 2, v0")
    for s in range(32):
        A(f"    buffer_load_dword v{100+s}, v2, s[24:27], s32 offen offset:{4*s}")
        A(f"    buffer_load_dword v{132+s}, v2, s[24:27], s33 offen offset:{4*s}")
    A("    s_waitcnt vmcnt(0)")
    for s in range(32):
        A(f"    buffer_load_dword v{164+s}, v3, s[24:27], s34 offen")
        A("    s_add_u32 s34, s34, 1024")
    A("    v_max_f32 v4, v100, v101")
    for s in range(2, 32):
        A(f"    v_max_f32 v4, v4, v{100+s}")
    A("    v_mov_b32 v5, 0")
    for s in range(32):
        A(f"    v_sub_f32 v{100+s}, v{100+s}, v4")
        A(f"    v_exp_f32 v{100+s}, v{100+s}")
        A("    s_nop 0")
        A(f"    v_fmac_f32 v5, v{100+s}, v{132+s}")
    A("    v_mov_b32 v6, 0")
    A("    s_waitcnt vmcnt(0)")
    for s in range(32):
        A(f"    v_fmac_f32 v6, v{100+s}, v{164+s}")
    A("    v_rcp_f32 v5, v5")
    A("    s_nop 0")
    A("    v_mul_f32 v6, v6, v5")
    bf16r("v6", "v7")
    A("    s_branch K3_COEF_ST")
    A("K3_HCOEF:")
    A("    s_sub_u32 s29, s2, 64")
    A("    s_lshl_b32 s29, s29, 8")
    A("    s_add_u32 s30, s29, %d" % WS_G)
    A("    s_add_u32 s31, s29, %d" % WS_U)
    A("    v_lshlrev_b32 v3, 2, v0")
    A("    buffer_load_dword v4, v3, s[24:27], s30 offen")
    A("    buffer_load_dword v5, v3, s[24:27], s31 offen")
    A("    s_waitcnt vmcnt(0)")
    A("    v_mul_f32 v4, 0xbfb8aa3b, v4")
    A("    v_exp_f32 v4, v4")
    A("    s_nop 0")
    A("    v_add_f32 v4, 1.0, v4")
    A("    v_rcp_f32 v4, v4")
    A("    s_nop 0")
    bf16r("v4", "v7")
    A("    v_mul_f32 v6, v4, v5")
    bf16r("v6", "v7")
    A("K3_COEF_ST:")
    A("    v_lshlrev_b32 v3, 2, v0")
    A("    ds_write_b32 v3, v6")
    A("K3_COEF_DONE:")
    A("    s_mov_b64 exec, s[40:41]")
    A("    s_waitcnt lgkmcnt(0)")
    A("    s_barrier")
    A("    v_mul_u32_u24 v2, 1171, v0")
    A("    v_lshrrev_b32 v2, 16, v2")
    A("    v_lshlrev_b32 v3, 2, v2")
    for it in range(8):
        A(f"    ds_read_b32 v{8+it}, v3 offset:{it*32}")
    for c in range(8):
        A(f"    v_mov_b32 v{16+c}, 0")
    A("    s_waitcnt lgkmcnt(0)")
    A("    s_waitcnt vmcnt(0)")
    for it in range(8):
        for d in range(4):
            r = 64 + 4*it + d
            A(f"    v_lshlrev_b32 v24, 16, v{r}")
            A(f"    v_and_b32 v25, 0xffff0000, v{r}")
            A(f"    v_fmac_f32 v{16+2*d}, v{8+it}, v24")
            A(f"    v_fmac_f32 v{17+2*d}, v{8+it}, v25")
    A("    v_lshlrev_b32 v3, 5, v0")
    A("    ds_write_b128 v3, v[16:19] offset:1024")
    A("    ds_write_b128 v3, v[20:23] offset:1040")
    A("    s_waitcnt lgkmcnt(0)")
    A("    s_barrier")
    A("    v_lshlrev_b32 v3, 2, v0")
    for g in range(8):
        A(f"    ds_read_b32 v{8+g}, v3 offset:{1024+g*1792}")
    A("    s_waitcnt lgkmcnt(0)")
    for g in range(1, 8):
        A(f"    v_add_f32 v8, v8, v{8+g}")
    A("    s_mul_i32 s28, s2, 1792")
    A("    s_add_u32 s28, s28, %d" % WS_OP)
    A("    buffer_store_dword v8, v3, s[24:27], s28 offen sc1")
    A("    s_waitcnt vmcnt(0)")
    A("    s_barrier")
    A("    v_cmp_eq_u32 vcc, 0, v0")
    A("    s_and_saveexec_b64 s[40:41], vcc")
    A("    v_mov_b32 v4, 0")
    A("    v_mov_b32 v5, 1")
    A("    global_atomic_add v6, v4, v5, s[14:15] sc0")
    A("    s_waitcnt vmcnt(0)")
    A("    v_mov_b32 v4, 0")
    A("    ds_write_b32 v4, v6 offset:16384")
    A("    s_mov_b64 exec, s[40:41]")
    A("    s_waitcnt lgkmcnt(0)")
    A("    s_barrier")
    A("    v_mov_b32 v4, 0")
    A("    ds_read_b32 v6, v4 offset:16384")
    A("    s_waitcnt lgkmcnt(0)")
    A("    v_readfirstlane_b32 s29, v6")
    A("    s_cmp_eq_u32 s29, 91")
    A("    s_cbranch_scc0 K3_END")
    A("    s_mov_b32 s28, %d" % WS_OP)
    for b in range(92):
        A(f"    buffer_load_dword v{64+b}, v3, s[24:27], s28 offen sc1")
        A("    s_add_u32 s28, s28, 1792")
    A("    s_mov_b32 s32, s4")
    A("    s_and_b32 s33, s5, 0xffff")
    A("    s_movk_i32 s34, 896")
    A("    s_mov_b32 s35, 0x00020000")
    A("    v_lshlrev_b32 v4, 1, v0")
    A("    buffer_load_ushort v5, v4, s[32:35], 0 offen")
    A("    s_waitcnt vmcnt(0)")
    A("    v_lshlrev_b32 v5, 16, v5")
    for b in range(1, 64):
        A(f"    v_add_f32 v64, v64, v{64+b}")
    for b in range(65, 92):
        A(f"    v_add_f32 v128, v128, v{64+b}")
    bf16r("v64", "v7")
    bf16r("v128", "v7")
    A("    v_add_f32 v5, v5, v64")
    bf16r("v5", "v7")
    A("    v_add_f32 v5, v5, v128")
    A("    v_cvt_pk_bf16_f32 v5, v5, v5")
    A("    s_mov_b32 s32, s10")
    A("    s_and_b32 s33, s11, 0xffff")
    A("    s_movk_i32 s34, 896")
    A("    s_mov_b32 s35, 0x00020000")
    A("    buffer_store_short v5, v4, s[32:35], 0 offen")
    A("K3_END:")
    A("    s_endpgm")

def desc(name, vgpr, sgpr):
    A(".p2align 6")
    A(f".amdhsa_kernel {name}")
    A(f"  .amdhsa_next_free_vgpr {vgpr}")
    A(f"  .amdhsa_next_free_sgpr {sgpr}")
    A(f"  .amdhsa_accum_offset {((vgpr+3)//4)*4}")
    A("  .amdhsa_group_segment_fixed_size 0")
    A("  .amdhsa_kernarg_size 96")
    A("  .amdhsa_user_sgpr_count 2")
    A("  .amdhsa_user_sgpr_kernarg_segment_ptr 1")
    A("  .amdhsa_system_sgpr_workgroup_id_x 1")
    A(".end_amdhsa_kernel")

A("; @launch kernel=ka_kernel grid=(376,1,1) block=(512,1,1) lds=40960")
A("; @launch kernel=k3_kernel grid=(92,1,1) block=(448,1,1) lds=20480")
A('.amdgcn_target "amdgcn-amd-amdhsa--gfx950"')
A(".text")
ka()
k3()
A('.section .rodata,"a"')
desc("ka_kernel", 128, 64)
desc("k3_kernel", 200, 64)
open(sys.argv[1] if len(sys.argv) > 1 else f"cdna_kernels/{NAME}.s", "w").write("\n".join(L) + "\n")
```
